```python
import torch

def _softmax(x, axis=-1):
    return torch.softmax(x, dim=axis)
def _gelu(x):
    return torch.nn.functional.gelu(x, approximate="tanh")
def _silu(x):
    return torch.nn.functional.silu(x)
def _sigmoid(x):
    return torch.sigmoid(x)
def _layernorm(x, axis=-1, eps=1e-5):
    m = x.mean(dim=axis, keepdim=True)
    v = x.var(dim=axis, keepdim=True, unbiased=False)
    return (x - m) / torch.sqrt(v + eps)
def _scatter_add(tgt, idx, src, axis=0):
    return tgt.clone().index_add_(axis, idx, src)
def _segment_sum(src, seg, n):
    out = torch.zeros((n,) + src.shape[1:], dtype=src.dtype)
    return out.index_add_(0, seg, src)
def _pad(x, pw):
    flat = tuple(v for pair in reversed(pw) for v in pair)
    return torch.nn.functional.pad(x, flat)

kernel_name = 'sequential_preLN__ssm_conv_s4d__dense_activation_silu__prompt'

def setup_inputs():

    _w = (lambda a: (lambda t: t.to(torch.bfloat16) if t.is_floating_point() else t)(torch.as_tensor(a)))
    def _A_setup():
        Bsz, L, D, N = 1, 2048, 448, 256
        return {
            "u": _w((lambda *s: torch.randn(*s, dtype=torch.bfloat16) * 0.05)(Bsz, L, D)),
            "log_A_real": _w((lambda *s: torch.randn(*s, dtype=torch.bfloat16) * 6.4)(D, N) * 0.5),
            "A_imag": _w((lambda *s: torch.randn(*s, dtype=torch.bfloat16) * 0.05)(D, N) * 3.14),
            "C_real": _w((lambda *s: torch.randn(*s, dtype=torch.bfloat16) * 0.05)(D, N) / N ** 0.5),
            "C_imag": _w((lambda *s: torch.randn(*s, dtype=torch.bfloat16) * 0.05)(D, N) / N ** 0.5),
            "log_dt": _w((lambda *s: torch.randn(*s, dtype=torch.bfloat16) * 0.05)(D) * 0.5 - 4.0),
            "D_skip": _w((lambda *s: torch.randn(*s, dtype=torch.bfloat16) * 0.05)(D)),
        }
    _A_in = _A_setup()

    def _B_setup():
        B, S, D, F = 1, 2048, 448, 1792
        return {
            "x": _w((lambda *s: torch.randn(*s, dtype=torch.bfloat16) * 0.05)(B, S, D)),
            "w1": _w((lambda *s: torch.randn(*s, dtype=torch.bfloat16) * 0.8)(D, F) * (D ** -0.5)),
            "w2": _w((lambda *s: torch.randn(*s, dtype=torch.bfloat16) * 0.2)(F, D) * (F ** -0.5)),
        }
    _B_in = _B_setup()

    return {
        "A_u": _A_in["u"],
        "A_log_A_real": _A_in["log_A_real"],
        "A_A_imag": _A_in["A_imag"],
        "A_C_real": _A_in["C_real"],
        "A_C_imag": _A_in["C_imag"],
        "A_log_dt": _A_in["log_dt"],
        "A_D_skip": _A_in["D_skip"],
        "B_x": _B_in["x"],
        "B_w1": _B_in["w1"],
        "B_w2": _B_in["w2"],
    }

def reference(A_u, A_log_A_real, A_A_imag, A_C_real, A_C_imag, A_log_dt, A_D_skip, B_x, B_w1, B_w2):
    def _A_ref(u, log_A_real, A_imag, C_real, C_imag, log_dt, D_skip):
        L = u.shape[1]
        dt = torch.exp(log_dt)
        A = -torch.exp(log_A_real) + 1j * A_imag
        C = (C_real + 1j * C_imag) * dt[:, None]
        pos = (lambda x, dt: x.to(dt))(torch.arange(L), log_dt.dtype)
        P = torch.exp((A * dt[:, None])[:, :, None] * pos[None, None, :])
        K = 2.0 * torch.einsum("dn,dnl->dl", C, P).real
        L2 = 2 * L
        u_t = (lambda x, *d: x.permute(*d))(u, 0, 2, 1)
        Kf = (lambda x, *a, **k: torch.fft.rfft(x.float(), *a, **k))(K, L2)
        Uf = (lambda x, *a, **k: torch.fft.rfft(x.float(), *a, **k))(u_t, L2)
        y = (lambda x, *a, **k: torch.fft.irfft(x, *a, **k).to(torch.bfloat16))(Uf * Kf[None, :, :], L2)[:, :, :L]
        y = (lambda x, *d: x.permute(*d))(y, 0, 2, 1)
        return y + u * D_skip[None, None, :]

    def _B_ref(x, w1, w2):
        h = torch.einsum("bsd,df->bsf", x, w1)
        h = _silu(h)
        out = torch.einsum("bsf,fd->bsd", h, w2)
        return out

    x = A_u
    h = x + _A_ref(_layernorm(x, axis=-1), A_log_A_real, A_A_imag, A_C_real, A_C_imag, A_log_dt, A_D_skip)
    h2 = h + _B_ref(_layernorm(h, axis=-1), B_w1, B_w2)
    return h2
```

```python
import re

TRANS = ("v_exp_f32", "v_log_f32", "v_rcp_f32", "v_rsq_f32", "v_sqrt_f32", "v_sin_f32", "v_cos_f32")
REG = re.compile(r"(?<![\w.])([vas])(\d+)\b|(?<![\w.])([vas])\[(\d+):(\d+)\]|\b(vcc|exec|m0)(?:_lo|_hi)?\b")

def regs(txt):
    out = set()
    for m in REG.finditer(txt):
        if m.group(1): out.add(m.group(1) + m.group(2))
        elif m.group(3): out.update(m.group(3) + str(i) for i in range(int(m.group(4)), int(m.group(5)) + 1))
        else: out.add(m.group(6))
    return out

def split_ops(rest):
    ops, depth, cur = [], 0, ""
    for ch in rest:
        if ch == "[": depth += 1
        if ch == "]": depth -= 1
        if ch == "," and depth == 0: ops.append(cur.strip()); cur = ""
        else: cur += ch
    if cur.strip(): ops.append(cur.strip())
    return ops

class Ins:
    def __init__(self, txt):
        self.txt = txt
        t = txt.split(";")[0].strip()
        self.label = t.endswith(":")
        p = t.split(None, 1)
        self.op = p[0] if p else ""
        ops = split_ops(p[1]) if len(p) > 1 else []
        op = self.op
        self.mfma = op.startswith("v_mfma")
        self.valu = op.startswith("v_") and not self.mfma
        self.salu = op.startswith("s_")
        self.ds = op.startswith("ds_")
        self.vmem = op.startswith(("global_", "buffer_"))
        self.trans = op.startswith(TRANS)
        self.dpp = bool(re.search(r"quad_perm|row_|wave_", t)) and self.valu
        self.perml = op.startswith("v_permlane")
        self.store = (self.vmem and ("store" in op or "atomic" in op)) or (self.ds and "write" in op)
        self.ldsdma = self.vmem and "_lds_" in op
        first = ops[0].split()[0] if ops else ""
        nodst = self.store or self.ldsdma or self.label or op.startswith(("s_cmp", "s_waitcnt", "s_nop", "s_barrier", "s_cbranch", "s_branch", "s_endpgm", "s_setprio", "s_sleep", "s_bitcmp"))
        self.dst = set() if nodst else regs(first)
        src_ops = ops if nodst else ops[1:]
        self.src = set()
        for o in src_ops: self.src |= regs(o)
        if self.perml: self.dst = regs(ops[0]) | regs(ops[1]); self.src = set(self.dst)
        if op.startswith(("v_fmac", "v_mac")) or self.dpp or "d16" in op or "sdwa" in op: self.src |= self.dst
        if op.startswith("v_cndmask") and "vcc" not in self.src and len(ops) == 3: self.src.add("vcc")
        if op.startswith("v_cmp") and op.endswith("_e32"): self.dst = {"vcc"}
        if "addtid" in op or self.ldsdma: self.src.add("m0")
        self.passes = 0
        if self.mfma:
            self.passes = 8 if "32x32" in op else 4
            self.srcC = regs(ops[3]); self.srcAB = regs(ops[1]) | regs(ops[2]); self.dtxt = ops[0]; self.ctxt = ops[3].split()[0]
        self.wide = self.vmem and self.store and ("x4" in op or "x3" in op)
        self.states = 1
        if op == "s_nop": self.states = int(ops[0]) + 1
        if self.label or not op: self.states = 0

def need(p, c):
    n = 0
    ov = lambda a, b: bool(a & b)
    vd = {r for r in p.dst if r[0] in "va" and r != "vcc"}
    sd = {r for r in p.dst if r[0] == "s" or r == "vcc"}
    if p.valu:
        if ov(vd, c.src):
            if c.dpp or c.perml: n = max(n, 2)
            if c.mfma: n = max(n, 2)
            if c.op.startswith(("v_readfirstlane", "v_readlane")): n = max(n, 1)
            if p.trans and c.valu and not c.trans: n = max(n, 1)
            if ("op_sel" in p.txt and not p.op.startswith("v_pk")) or "sdwa" in p.op: n = max(n, 1)
        if ov(sd, c.src):
            if c.vmem: n = max(n, 5)
            if c.valu: n = max(n, 2)
            if c.op.startswith(("v_readlane", "v_writelane")): n = max(n, 4)
        if "exec" in p.dst: n = max(n, 5)
    if p.salu and "m0" in p.dst and "m0" in c.src and not c.salu: n = max(n, 1)
    if p.mfma:
        big = 12 if p.passes == 8 else 8
        if c.mfma:
            if ov(p.dst, c.srcAB): n = max(n, big)
            if ov(p.dst, c.srcC) and not (c.ctxt == p.dtxt and c.passes == p.passes): n = max(n, big - 2)
            if ov(p.dst, c.dst) and not ov(p.dst, c.srcC): n = max(n, big)
        elif ov(p.dst, c.src | c.dst): n = max(n, big)
        if c.valu and ov(p.srcC, c.dst): n = max(n, 7 if p.passes == 8 else 3)
    if p.wide and ov(p.src, c.dst) and not c.salu: n = max(n, 2)
    return n

def fix_hazards(lines):
    out, hist, pads = [], [], 0
    for txt in lines:
        c = Ins(txt)
        if c.op and not c.label:
            dist, worst = 0, 0
            for p in reversed(hist):
                k = need(p, c)
                if k > dist: worst = max(worst, k - dist)
                dist += p.states
                if dist >= 13: break
            if worst:
                nop = f"s_nop {worst - 1}"
                out.append("    " + nop); hist.append(Ins(nop)); pads += worst
            hist.append(c); hist = hist[-16:]
        out.append(txt if c.label else "    " + txt)
    return out, pads

class Asm:
    def __init__(self): self.l = []
    def __call__(self, txt):
        for t in txt.strip().split("\n"):
            t = t.strip()
            if t: self.l.append(t)
    def ext(self, lst): self.l.extend(lst)

def weave(a, b, ratio=None):
    if not b: return list(a)
    out, j = [], 0
    for i, x in enumerate(a):
        out.append(x)
        want = (i + 1) * len(b) // len(a)
        while j < want: out.append(b[j]); j += 1
    out.extend(b[j:])
    return out

def v(i, n=1): return f"v{i}" if n == 1 else f"v[{i}:{i+n-1}]"
def a(i, n=1): return f"a{i}" if n == 1 else f"a[{i}:{i+n-1}]"
def s(i, n=1): return f"s{i}" if n == 1 else f"s[{i}:{i+n-1}]"
```

```python
from asmlib import *

NWG, NMAIN = 256, 224
WS_STATS, WS_FLAGP, WS_FLAG2, WS_FLAG3 = 0x1000, 0x8000, 0x10000, 0x18000
WS_W1F, WS_W2F, WS_HT, WS_H1S, WS_DBG = 0x100000, 0x300000, 0x500000, 0x800000, 0x1000000
SP = 1056
S_CH = 53 * SP
T_PRE = 112128
T_CH = 3072
UB, U_CH, U_A = 120576, 8704, 4240
XS = 137984
K_CH, K_CP = 18688, 4640
LDS_BYTES = 154368
SPIN = 20000

sW, sC, sTB, sFB, sTag, sDT, sDsk, sCh = "s3", "s4", "s5", "s6", "s7", "s32", "s33", "s34"
pU, pLA, pAI, pCR, pCI, pLDT, pD, pW1, pW2, pOUT, pWS = [f"s[{i}:{i+1}]" for i in (8, 10, 12, 14, 16, 18, 20, 24, 26, 28, 30)]
vTid, vLane = "v0", "v1"
LOG2E = 0x3fb8aa3b
LOG2E_LO = 0x32a57060
LN2 = 0x3f317218
INV2PI = 0x3e22f983

def wsbase(A, dst, off):
    A(f"s_add_u32 s{dst}, s30, {off}\ns_addc_u32 s{dst+1}, s31, 0")

def exp_precise(A, d, x, t0, t1):
    A(f"""v_mul_f32 {t0}, s50, {x}
    v_fma_f32 {t1}, {x}, s50, -{t0}
    v_fmac_f32 {t1}, s51, {x}
    v_exp_f32 {d}, {t0}
    v_mul_f32 {t1}, s52, {t1}
    v_fmac_f32 {d}, {d}, {t1}""")

def prologue(A):
    A(f"""s_cmp_ge_u32 s2, {NWG}
    s_cbranch_scc1 L_end
    s_load_dwordx16 s[8:23], s[0:1], 0
    s_load_dwordx4 s[24:27], s[0:1], 64
    s_load_dwordx2 s[28:29], s[0:1], 80
    s_load_dwordx2 s[30:31], s[0:1], 96
    v_lshrrev_b32 v2, 6, v0
    v_and_b32 {vLane}, 63, v0
    v_readfirstlane_b32 {sW}, v2
    s_and_b32 s36, s2, 7
    s_lshr_b32 s37, s2, 3
    s_mul_i32 s38, s36, 28
    s_add_u32 {sC}, s38, s37
    s_min_u32 {sC}, {sC}, 223
    s_mul_i32 s38, s37, 37
    s_lshr_b32 s38, s38, 8
    s_mul_i32 s39, s38, 7
    s_sub_u32 {sFB}, s37, s39
    s_lshl_b32 s36, s36, 2
    s_add_u32 {sTB}, s36, s38
    s_lshr_b32 {sCh}, {sW}, 2
    s_lshl_b32 s36, s2, 3
    s_add_u32 s35, s36, {sW}
    s_mul_i32 s36, s35, 896
    v_lshlrev_b32 v2, 4, {vLane}
    v_add_u32 v2, s36, v2
    s_sub_u32 s40, 255, s2
    s_lshl_b32 s41, s40, 3
    s_add_u32 s41, s41, {sW}
    s_min_u32 s42, s41, 1567
    s_cmp_ge_u32 s42, 784
    s_cselect_b32 s43, 1, 0
    s_cselect_b32 s44, 784, 0
    s_cselect_b32 s45, 18, 16
    s_cselect_b32 s46, 112, 28
    s_movk_i32 s47, 3584
    s_cselect_b32 s47, 896, s47
    s_sub_u32 s42, s42, s44
    s_mul_i32 s48, s42, 2341
    s_lshr_b32 s48, s48, s45
    s_mul_i32 s49, s48, s46
    s_sub_u32 s49, s42, s49
    v_lshrrev_b32 v3, 3, {vLane}
    v_mul_lo_u32 v3, v3, s47
    v_and_b32 v4, 7, {vLane}
    v_lshl_add_u32 v3, v4, 4, v3
    s_lshl_b32 s53, s49, 4
    s_mul_i32 s53, s53, s47
    s_lshl_b32 s54, s48, 7
    s_add_u32 s53, s53, s54
    v_add_u32 v3, s53, v3
    s_lshl_b32 s54, s47, 3
    v_add_u32 v4, s54, v3
    s_lshl_b32 s55, {sC}, 10
    v_lshl_add_u32 v5, v0, 1, s55
    s_lshl_b32 s56, {sW}, 11
    s_add_u32 s56, s56, {XS}
    s_lshl_b32 s55, {sC}, 2
    v_mov_b32 v10, 0
    v_mov_b32 v11, 0
    v_mov_b32 v12, 0
    v_mov_b32 v13, 0
    v_mov_b32 v14, 0
    v_mov_b32 v15, 0
    v_mov_b32 v16, 0
    v_mov_b32 v17, 0
    s_mov_b32 m0, s56
    s_cmp_lg_u32 s43, 0
    s_waitcnt lgkmcnt(0)
    s_cselect_b32 s58, s26, s24
    s_cselect_b32 s59, s27, s25
    s_mov_b32 exec_hi, 0x00ffffff
    global_load_dwordx4 v[10:13], v2, {pU}
    s_mov_b64 exec, -1
    s_load_dword {sTag}, {pWS}, 0
    s_load_dword {sDT}, {pLDT}, s55
    s_load_dword {sDsk}, {pD}, s55
    global_load_lds_dwordx4 v3, s[58:59]
    s_add_u32 m0, m0, 1024
    global_load_short_d16_hi v14, v5, {pLA}
    global_load_lds_dwordx4 v4, s[58:59]
    global_load_short_d16_hi v15, v5, {pAI}
    global_load_short_d16_hi v16, v5, {pCR}
    global_load_short_d16_hi v17, v5, {pCI}
    s_mov_b32 s50, {LOG2E}
    s_mov_b32 s51, {LOG2E_LO}
    s_mov_b32 s52, {LN2}""")
    A(f"""s_mul_i32 s36, {sCh}, {T_CH}
    s_add_u32 s36, s36, {T_PRE + 16}
    s_sub_u32 s37, s36, {4 * 0x4280}
    v_and_b32 v6, 255, v0
    v_lshlrev_b32 v6, 3, v6
    s_movk_i32 s38, 256""")
    for k in range(11):
        t = 44 + 2 * (k % 4)
        A(f"""v_add_u32 v{t}, {k - 3}, v6
        v_cvt_f32_u32 v{t+1}, v{t}
        v_cmp_gt_i32 vcc, s38, v{t}
        v_cvt_pk_bf16_f32 v{t+1}, v{t+1}, 0
        v_lshl_add_u32 v{t}, v{t}, 2, s36
        v_lshl_add_u32 v{t+1}, v{t+1}, 2, s37
        v_cndmask_b32 v{32+k}, v{t+1}, v{t}, vcc""")
    A(f"""v_and_b32 v6, 15, {vLane}
    s_and_b32 s38, {sW}, 1
    s_lshl_b32 s38, s38, 4
    v_add_u32 v6, s38, v6
    v_lshrrev_b32 v7, 4, {vLane}
    s_lshl_b32 s38, {sW}, 1
    s_and_b32 s38, s38, 4
    v_add_u32 v7, s38, v7
    v_lshlrev_b32 v44, 3, v6
    v_lshl_add_u32 v44, v7, 2, v44
    v_mov_b32 v45, 1
    v_mov_b32 v46, 2
    v_cmp_eq_u32 vcc, 2, v7
    v_lshlrev_b32 v47, 2, v6
    v_add_u32 v47, 256, v47
    v_cndmask_b32 v44, v44, v47, vcc
    v_cmp_eq_u32 vcc, 3, v7
    v_lshlrev_b32 v47, 1, v6
    v_add_u32 v47, 384, v47
    v_cndmask_b32 v44, v44, v47, vcc
    v_cmp_le_u32 vcc, 3, v7
    v_mov_b32 v47, 64
    v_add_u32 v48, 512, v6
    v_cndmask_b32 v46, v46, v47, vcc
    v_cmp_eq_u32 vcc, 4, v7
    v_mov_b32 v47, 32
    v_mov_b32 v49, 0
    v_cndmask_b32 v44, v44, v48, vcc
    v_cndmask_b32 v45, v45, v47, vcc
    v_cmp_le_u32 vcc, 5, v7
    v_mov_b32 v47, 700
    v_lshl_add_u32 v48, v7, 5, v6
    v_cndmask_b32 v44, v44, v47, vcc
    v_cndmask_b32 v45, v45, v49, vcc
    v_cndmask_b32 v46, v46, v49, vcc
    s_movk_i32 s38, 160
    v_cmp_eq_u32 vcc, s38, v48
    v_mov_b32 v47, 640
    v_cndmask_b32 v44, v44, v47, vcc
    v_lshl_add_u32 v22, v44, 2, s36
    v_lshl_add_u32 v23, v45, 2, v22
    v_lshl_add_u32 v43, v46, 2, v22
    v_lshl_add_u32 v9, v45, 2, v43""")
    A(f"""s_lshr_b32 s36, {sW}, 1
    s_and_b32 s36, s36, 1
    s_mul_i32 s36, s36, {U_CH}
    s_and_b32 s37, {sW}, 1
    s_mul_i32 s37, s37, {U_A - 8}
    s_add_u32 s36, s36, s37
    s_add_u32 s36, s36, {UB + 4104}
    v_lshl_add_u32 v6, {vLane}, 3, s36
    v_mov_b32 v44, 0
    v_mov_b32 v45, 0
    s_mul_i32 s37, {sCh}, {T_CH}
    s_add_u32 s37, s37, {T_PRE}
    v_mov_b32 v7, s37
    s_mov_b64 exec, 0x7fff
    ds_write_b64 v6, v[44:45]
    ds_write_b64 v7, v[44:45]
    ds_write_b64 v7, v[44:45] offset:8
    s_mov_b64 exec, -1""")

def ln1_stats(A):
    A("s_waitcnt vmcnt(6)")
    for i in range(4):
        A(f"v_lshlrev_b32 v{44+2*i}, 16, v{10+i}\nv_and_b32 v{45+2*i}, 0xffff0000, v{10+i}")
    A("v_add_f32 v52, v44, v45\nv_mul_f32 v53, v44, v44\nv_fmac_f32 v53, v45, v45")
    for i in range(2, 8):
        A(f"v_add_f32 v52, v52, v{44+i}\nv_fmac_f32 v53, v{44+i}, v{44+i}")
    for sh in (8, 4, 2, 1):
        A(f"v_add_f32_dpp v52, v52, v52 row_ror:{sh} row_mask:0xf bank_mask:0xf\nv_add_f32_dpp v53, v53, v53 row_ror:{sh} row_mask:0xf bank_mask:0xf")
    for p in ("v_permlane16_swap_b32", "v_permlane32_swap_b32"):
        A(f"v_mov_b32 v54, v52\nv_mov_b32 v55, v53\n{p} v52, v54\n{p} v53, v55\nv_add_f32 v52, v52, v54\nv_add_f32 v53, v53, v55")
    ln_finish(A, 52, 53, 54, 55)
    A(f"""s_waitcnt lgkmcnt(0)
    s_add_u32 {sTag}, {sTag}, 1
    v_and_b32 v54, 0xffff0000, v55
    v_lshrrev_b32 v52, 16, v52
    v_or_b32 v54, v54, v52
    v_mov_b32 v55, {sTag}
    s_lshl_b32 s36, s35, 3
    s_add_u32 s36, s36, {WS_STATS}
    v_mov_b32 v56, s36
    s_mov_b64 exec, 1
    global_store_dwordx2 v56, v[54:55], {pWS} sc1
    s_mov_b64 exec, -1""")

def ln_finish(A, su, sq, t0, t1):
    A(f"""v_mul_f32 v{su}, 0x3b124925, v{su}
    v_mul_f32 v{sq}, 0x3b124925, v{sq}
    v_fma_f32 v{sq}, -v{su}, v{su}, v{sq}
    v_max_f32 v{sq}, 0, v{sq}
    v_cvt_pk_bf16_f32 v{t0}, v{su}, v{sq}
    v_lshlrev_b32 v{su}, 16, v{t0}
    v_and_b32 v{t0}, 0xffff0000, v{t0}
    v_add_f32 v{t0}, 0x3727c5ac, v{t0}
    v_cvt_pk_bf16_f32 v{t0}, v{t0}, v{t0}
    v_and_b32 v{t0}, 0xffff0000, v{t0}
    v_sqrt_f32 v{t0}, v{t0}
    v_cvt_pk_bf16_f32 v{t1}, v{t0}, v{t0}
    v_and_b32 v{t1}, 0xffff0000, v{t1}""")

def weight_prep(A):
    A(f"""v_lshrrev_b32 v44, 5, {vLane}
    s_cmp_lg_u32 s43, 0
    s_movk_i32 s36, 1024
    s_movk_i32 s37, 512
    s_mov_b32 s38, {WS_W1F}
    s_cselect_b32 s36, 512, s36
    s_cselect_b32 s37, 1024, s37
    s_cselect_b32 s38, {WS_W2F}, s38
    v_mul_lo_u32 v44, v44, s36
    v_bfe_u32 v45, {vLane}, 2, 2
    v_lshl_add_u32 v44, v45, 7, v44
    v_bfe_u32 v45, {vLane}, 4, 1
    v_lshl_add_u32 v44, v45, 5, v44
    v_and_b32 v45, 3, {vLane}
    v_lshl_add_u32 v44, v45, 3, v44
    v_add_u32 v44, s56, v44
    v_add_u32 v45, s37, v44
    s_lshl_b32 s39, s48, 1
    s_mul_i32 s39, s39, s46
    s_add_u32 s39, s39, s49
    s_lshl_b32 s39, s39, 10
    s_add_u32 s38, s38, s39
    s_lshl_b32 s39, s46, 10
    v_lshl_add_u32 v46, {vLane}, 4, s38
    v_add_u32 v47, s39, v46
    s_waitcnt vmcnt(1)
    ds_read_b64_tr_b16 v[48:49], v44
    ds_read_b64_tr_b16 v[50:51], v45
    ds_read_b64_tr_b16 v[52:53], v44 offset:64
    ds_read_b64_tr_b16 v[54:55], v45 offset:64
    s_cmp_ge_u32 s41, 1568
    s_waitcnt lgkmcnt(0)
    s_cbranch_scc1 L_noprep
    global_store_dwordx4 v46, v[48:51], {pWS} sc1
    global_store_dwordx4 v47, v[52:55], {pWS} sc1
    L_noprep:
    s_lshl_b32 s36, s40, 6
    s_add_u32 s36, s36, {WS_FLAGP}
    v_mov_b32 v8, s36
    s_cmp_lt_u32 s2, {NMAIN}
    s_cbranch_scc1 L_main
    s_waitcnt vmcnt(0)
    s_barrier
    v_mov_b32 v44, {sTag}
    s_mov_b64 exec, 1
    global_store_dword v8, v44, {pWS} sc1
    s_endpgm
    L_main:
    s_movk_i32 s36, 3584
    v_mul_lo_u32 v44, v0, s36
    v_add_u32 v44, s55, v44
    global_load_dword v18, v44, {pU}
    global_load_dword v19, v44, {pU} offset:896
    global_load_dword v20, v44, {pU} offset:1792
    global_load_dword v21, v44, {pU} offset:2688""")

def cmul(d, x, y):
    return [f"v_pk_mul_f32 {v(d,2)}, {v(x,2)}, {v(y,2)} op_sel:[0,0] op_sel_hi:[0,1]",
            f"v_pk_fma_f32 {v(d,2)}, {v(x,2)}, {v(y,2)}, {v(d,2)} op_sel:[1,1,0] op_sel_hi:[1,0,1] neg_lo:[1,0,0]"]

def kgen_chains(A):
    ZR, ZI, C, W1, W8, E256, W2, W4, W16 = 44, 45, 46, 48, 50, 52, 54, 56, 58
    A(f"""s_lshr_b32 s36, {sDT}, 16
    s_and_b32 s37, {sDT}, 0xffff
    s_cmp_lg_u32 {sCh}, 0
    s_cselect_b32 s36, s36, s37
    s_lshl_b32 s36, s36, 16
    v_mov_b32 v60, s36
    s_mul_i32 s37, {sCh}, {S_CH}
    s_and_b32 s38, {sW}, 3
    s_lshl_b32 s38, s38, 8
    s_add_u32 s37, s37, s38
    s_mov_b32 m0, s37""")
    exp_precise(A, "v61", "v60", "v62", "v63")
    exp_precise(A, "v64", "v14", "v62", "v63")
    A(f"""v_cvt_pk_bf16_f32 v61, v61, v64
    v_and_b32 v64, 0xffff0000, v61
    v_lshlrev_b32 v61, 16, v61
    v_mul_f32 v{ZR}, -v64, v61
    v_mul_f32 v{ZI}, v15, v61
    v_mul_f32 v{C}, v16, v61
    v_mul_f32 v{C+1}, v17, v61
    v_add_f32 v{C}, v{C}, v{C}
    v_add_f32 v{C+1}, v{C+1}, v{C+1}
    s_mov_b32 s38, {INV2PI}""")
    for i, (dst, p) in enumerate(((W1, "1.0"), (W8, "0x41000000"), (E256, "0x43800000"))):
        t = 60 + 4 * i
        A(f"""v_mul_f32 v{t}, {p}, v{ZR}
        v_mul_f32 v{t+1}, {p}, v{ZI}
        v_mul_f32 v{t}, s50, v{t}
        v_mul_f32 v{t+1}, s38, v{t+1}
        v_exp_f32 v{t}, v{t}
        v_fract_f32 v{t+1}, v{t+1}""")
    for i, dst in enumerate((W1, W8, E256)):
        t = 60 + 4 * i
        A(f"v_cos_f32 v{t+2}, v{t+1}\nv_sin_f32 v{t+3}, v{t+1}")
    for i, dst in enumerate((W1, W8, E256)):
        t = 60 + 4 * i
        A(f"v_mul_f32 v{dst}, v{t}, v{t+2}\nv_mul_f32 v{dst+1}, v{t}, v{t+3}")
    cnt = [0]
    def emit(r, vec, neg):
        t = 80 + cnt[0] % 8; cnt[0] += 1
        return [f"v_cvt_pk_bf16_f32 v{t}, v{r}, {'-' if neg else ''}v{r+1}", f"ds_write_addtid_b32 v{t} offset:{vec * SP}"]
    def chain(start, mul, vecs, regs2, neg):
        g, cur = [], start
        for k, vec in enumerate(vecs):
            d = regs2[k % 2]
            g.append((cmul(d, cur, mul), d, vec, neg)); cur = d
        return g, cur
    A.ext(cmul(W16, W8, W8) + cmul(W2, W1, W1) + cmul(W4, W2, W2))
    A("v_mov_b32 v60, 1.0\nv_mov_b32 v61, 0")
    A.ext(emit(60, 21, False) + emit(W8, 22, False) + emit(W16, 23, False) + emit(C, 0, True))
    gE, _ = chain(W16, W16, range(25, 53, 2), (60, 62), False)
    gO, _ = chain(W8, W16, range(24, 53, 2), (64, 66), False)
    gA, _ = chain(C, W1, range(1, 8), (68, 70), True)
    q = [(cmul(72, C, E256), 72, 8, True), (cmul(74, 72, E256), 74, 12, True), (cmul(76, 74, E256), 76, 14, True),
         (cmul(78, 76, E256), 78, 16, True)]
    gB, _ = chain(72, W2, range(9, 12), (68, 70), True)
    gC = [(cmul(68, 74, W4), 68, 13, True), (cmul(70, 76, W4), 70, 15, True)]
    gD, _ = chain(78, E256, range(17, 21), (68, 70), True)
    third = gA + q + gB + gC + gD
    lanes = [gE, gO, third]
    n = max(len(x) for x in lanes)
    idx = [0, 0, 0]
    for step in range(len(third)):
        batch = [third[step]]
        for li in (0, 1):
            want = (step + 1) * len(lanes[li]) // len(third)
            while idx[li] < want: batch.append(lanes[li][idx[li]]); idx[li] += 1
        if len({b[1] for b in batch}) < len(batch):
            for b in batch: A.ext(b[0] + emit(b[1], b[2], b[3]))
            continue
        for k in range(2):
            for b in batch: A(b[0][k])
        es = [emit(b[1], b[2], b[3]) for b in batch]
        for e in es: A(e[0])
        for e in es: A(e[1])

def stats_loads(): return [f"global_load_dwordx4 v[24:27], v8, {pWS} sc1", f"global_load_dwordx4 v[28:31], v8, {pWS} offset:16 sc1"]

def kgen_sync(A):
    A(f"""s_waitcnt vmcnt(4) lgkmcnt(0)
    s_barrier
    s_cmp_lg_u32 {sW}, 0
    s_cbranch_scc1 L_noflagp
    v_mov_b32 v44, {sTag}
    s_mov_b64 exec, 1
    global_store_dword v8, v44, {pWS} sc1
    s_mov_b64 exec, -1
    L_noflagp:
    v_lshlrev_b32 v8, 5, v0
    v_add_u32 v8, {WS_STATS}, v8
    s_mov_b32 s60, 0""")
    A.ext(stats_loads())

def kgen_mfma():
    A = Asm()
    A(f"""v_and_b32 v2, 15, {vLane}
    v_lshrrev_b32 v3, 4, {vLane}
    v_mul_u32_u24 v2, {SP}, v2
    v_lshl_add_u32 v2, v3, 4, v2
    s_mul_i32 s36, {sCh}, {S_CH}
    s_lshl_b32 s37, {sW}, 3
    s_and_b32 s37, s37, 16
    s_mul_i32 s37, s37, {SP}
    s_add_u32 s37, s37, s36
    s_lshl_b32 s38, {sW}, 4
    s_and_b32 s38, s38, 16
    s_add_u32 s38, s38, 21
    s_mul_i32 s38, s38, {SP}
    s_add_u32 s38, s38, s36
    v_add_u32 v3, s38, v2
    v_add_u32 v2, s37, v2""")
    R = 6
    def rd(k):
        b = 92 + 8 * (k % R)
        return [f"ds_read_b128 {v(b,4)}, v2 offset:{64*k}", f"ds_read_b128 {v(b+4,4)}, v3 offset:{64*k}"]
    for k in range(R - 1): A.ext(rd(k))
    for k in range(16):
        if k + R - 1 < 16: A.ext(rd(k + R - 1))
        left = min(16, k + R) - (k + 1)
        b = 92 + 8 * (k % R)
        A(f"s_waitcnt lgkmcnt({2*left})")
        A(f"v_mfma_f32_16x16x32_bf16 v[88:91], {v(b,4)}, {v(b+4,4)}, {'0' if k == 0 else 'v[88:91]'}")
    A("ds_write_b32 v9, v91\nds_write_b32 v43, v90\nds_write_b32 v23, v89\nds_write_b32 v22, v88")
    return A.l

def stats_check(A):
    A(f"""L_spoll:
    s_waitcnt vmcnt(0)
    v_cmp_ne_u32 vcc, {sTag}, v25
    v_cmp_ne_u32 s[36:37], {sTag}, v27
    v_cmp_ne_u32 s[38:39], {sTag}, v29
    v_cmp_ne_u32 s[40:41], {sTag}, v31
    s_or_b64 s[36:37], s[36:37], vcc
    s_or_b64 s[38:39], s[38:39], s[40:41]
    s_or_b64 s[36:37], s[36:37], s[38:39]
    s_cbranch_scc0 L_sdone
    s_add_u32 s60, s60, 1
    s_cmp_gt_u32 s60, {SPIN}
    s_cbranch_scc1 L_sdone""")
    A.ext(stats_loads())
    A("s_branch L_spoll\nL_sdone:")

def uprep():
    A = Asm()
    A(f"s_lshl_b32 s42, {sDsk}, 16\ns_and_b32 s43, {sDsk}, 0xffff0000")
    U = 60
    for i in range(4):
        ms, t = 24 + 2 * i, 44 + 4 * (i % 2)
        A(f"""v_and_b32 v{ms+1}, 0xffff0000, v{ms}
        v_lshlrev_b32 v{ms}, 16, v{ms}
        v_rcp_f32 v{ms+1}, v{ms+1}
        v_lshlrev_b32 v{t}, 16, v{18+i}
        v_and_b32 v{t+1}, 0xffff0000, v{18+i}
        v_sub_f32 v{t}, v{t}, v{ms}
        v_sub_f32 v{t+1}, v{t+1}, v{ms}
        v_cvt_pk_bf16_f32 v{t+2}, v{t}, v{t+1}
        v_lshlrev_b32 v{t}, 16, v{t+2}
        v_and_b32 v{t+1}, 0xffff0000, v{t+2}
        v_mul_f32 v{U+i}, v{t}, v{ms+1}
        v_mul_f32 v{U+4+i}, v{t+1}, v{ms+1}""")
    A(f"""v_lshlrev_b32 v4, 3, v0
    v_sub_u32 v5, {UB + 4096}, v4
    v_add_u32 v4, {XS}, v4
    s_mov_b32 s44, 0x05040100
    s_mov_b32 s45, 0x07060302""")
    for ch in range(2):
        u, p = U + 4 * ch, 52 + 0
        sd, sel = ("s42", "s44") if ch == 0 else ("s43", "s45")
        A(f"""v_cvt_pk_bf16_f32 v{p}, v{u+3}, v{u+2}
        v_cvt_pk_bf16_f32 v{p+1}, v{u+1}, v{u}
        v_perm_b32 v{p+2}, v19, v18, {sel}
        v_perm_b32 v{p+3}, v21, v20, {sel}
        ds_write_b64 v5, {v(p,2)} offset:{ch*U_CH}
        ds_write_b64 v5, {v(p,2)} offset:{ch*U_CH + U_A - 8}
        ds_write_b64 v4, {v(p+2,2)} offset:{ch*4096}
        v_and_b32 v{u}, 0xffff0000, v{p+1}
        v_lshlrev_b32 v{u+1}, 16, v{p+1}
        v_and_b32 v{u+2}, 0xffff0000, v{p}
        v_lshlrev_b32 v{u+3}, 16, v{p}
        v_mul_f32 v{u}, {sd}, v{u}
        v_mul_f32 v{u+1}, {sd}, v{u+1}
        v_mul_f32 v{u+2}, {sd}, v{u+2}
        v_mul_f32 v{u+3}, {sd}, v{u+3}
        v_cvt_pk_bf16_f32 v{p+4}, v{u}, v{u+1}
        v_cvt_pk_bf16_f32 v{p+5}, v{u+2}, v{u+3}
        ds_write_b64 v4, {v(p+4,2)} offset:{8192 + ch*4096}""")
    return A.l

def expand(A):
    A("s_waitcnt lgkmcnt(0)\ns_barrier")
    for k in range(11): A(f"ds_read_b32 v{44+k}, v{32+k}")
    A(f"""v_and_b32 v2, 255, v0
    s_mul_i32 s36, {sCh}, {K_CH}
    v_lshl_add_u32 v2, v2, 4, s36
    s_and_b32 s37, {sW}, 3
    s_cmp_lg_u32 s37, 0
    s_cbranch_scc1 L_nokz
    v_mov_b32 v56, 0
    v_mov_b32 v57, 0
    v_mov_b32 v58, 0
    v_mov_b32 v59, 0
    s_mov_b64 exec, 0xffffff""")
    for b in range(4): A(f"ds_write_b128 v2, v[56:59] offset:{b*K_CP}")
    A("s_mov_b64 exec, -1\nL_nokz:")
    A("s_waitcnt lgkmcnt(0)")
    for b in range(4):
        for j in range(4):
            A(f"v_cvt_pk_bf16_f32 v{56+4*b+j}, v{44+b+2*j}, v{45+b+2*j}")
        A(f"ds_write_b128 v2, {v(56+4*b,4)} offset:{b*K_CP + 384}")

def part1(A, stamp):
    stamp(A, 0); prologue(A); ln1_stats(A); weight_prep(A); kgen_chains(A); stamp(A, 1); kgen_sync(A)
    m = kgen_mfma()
    A.ext(m)
    stats_check(A)
    A.ext(uprep())
    expand(A)
```

```python
from asmlib import *
from gen1 import *
import gen1

PROF = [False]
def stamp(A, i):
    if PROF[0]: A(f"s_memtime s[{72+2*i}:{73+2*i}]")

def poll(A, tag, loads, regs_, cnt="s60"):
    A(f"s_mov_b32 {cnt}, 0\nL_{tag}_poll:")
    A.ext(loads)
    A("s_waitcnt vmcnt(0)")
    A(f"v_cmp_ne_u32 vcc, {sTag}, v{regs_[0]}")
    for r in regs_[1:]:
        A(f"v_cmp_ne_u32 s[36:37], {sTag}, v{r}\ns_or_b64 vcc, vcc, s[36:37]")
    A(f"""s_cbranch_vccz L_{tag}_done
    s_add_u32 {cnt}, {cnt}, 1
    s_cmp_le_u32 {cnt}, {SPIN}
    s_cbranch_scc1 L_{tag}_poll
    L_{tag}_done:""")

def w1_setup(A):
    A(f"""v_min_u32 v6, 13, {vLane}
    s_mul_i32 s36, {sFB}, 14
    v_add_u32 v6, s36, v6
    v_lshlrev_b32 v6, 6, v6
    v_add_u32 v6, {WS_FLAGP}, v6
    global_load_dword v7, v6, {pWS} sc1
    v_lshlrev_b32 v5, 4, {vLane}
    s_lshl_b32 s36, {sFB}, 3
    s_add_u32 s61, s36, {sW}
    s_mul_i32 s36, s61, 28672
    s_add_u32 s36, s36, {WS_W1F + 3072}
    s_lshr_b32 s37, {sW}, 1""")
    for j in range(4):
        A(f"""s_add_u32 s38, s37, {j}
        s_and_b32 s38, s38, 3
        s_mul_i32 s38, s38, 7168
        s_add_u32 s38, s38, s36
        s_add_u32 s{62+2*j}, s30, s38
        s_addc_u32 s{63+2*j}, s31, 0""")
    A(f"""v_and_b32 v2, 3, {vLane}
    v_mul_u32_u24 v2, {K_CP}, v2
    v_bfe_u32 v3, {vLane}, 2, 2
    v_lshl_add_u32 v2, v3, 7, v2
    v_lshrrev_b32 v16, 4, {vLane}
    v_lshl_add_u32 v2, v16, 4, v2
    s_mul_i32 s36, {sCh}, {K_CH}
    v_add_u32 v2, s36, v2
    v_and_b32 v17, 15, {vLane}
    v_lshlrev_b32 v17, 3, v17
    v_and_b32 v3, 1, {vLane}
    v_mul_u32_u24 v3, {U_A - 8}, v3
    v_lshl_add_u32 v3, v16, 4, v3
    v_sub_u32 v3, v3, v17
    s_mul_i32 s36, {sCh}, {U_CH}
    s_add_u32 s36, s36, {UB + 128}
    v_add_u32 v3, s36, v3
    v_lshl_add_u32 v4, v16, 7, v17
    s_lshl_b32 s36, {sCh}, 12
    s_add_u32 s36, s36, {XS}
    v_add_u32 v4, s36, v4
    s_waitcnt vmcnt(0) lgkmcnt(0)
    v_cmp_ne_u32 vcc, {sTag}, v7
    s_barrier
    s_cbranch_vccz L_fp_ok""")
    poll(A, "fp", [f"global_load_dword v7, v6, {pWS} sc1"], [7])
    A("L_fp_ok:")

def w1_loads():
    return [f"global_load_dwordx4 {a(4*s_,4)}, v5, s[{62+2*(s_//7)}:{63+2*(s_//7)}] offset:{(s_%7-3)*1024} sc1" for s_ in range(28)]

class Pipe:
    def __init__(self, out): self.out, self.n, self.done = out, 0, 0
    def issue(self, txt): self.out.append(txt); self.n += 1; return self.n
    def wait(self, seq):
        if seq > self.done:
            left = self.n - seq
            self.out.append(f"s_waitcnt lgkmcnt({min(left, 15)})")
            self.done = seq if left <= 15 else self.n - 15
        return

def conv_variant(gs):
    gb = 7 - gs
    mf = []
    for ks in range(2):
        for mu in range(4 * gb + 4):
            mf.append((("A", 4 * gb - mu, ks), ("B", mu, ks), 12))
            if mu <= 4 * gs + 3: mf.append((("A", 4 * gs - mu, ks), ("B", mu, ks), 8))
    last = {}
    order = []
    for i, (x, y, _) in enumerate(mf):
        for k in (y, x):
            if k not in last: order.append((k, i))
            last[k] = i
    out = []; P = Pipe(out)
    free = list(range(24, 144, 4)); reg = {}; seq = {}; nxt = 0; seen = {8: False, 12: False}
    loads = w1_loads(); li = 0
    def rd(k):
        r = free.pop(0); reg[k] = r
        if k[0] == "A": seq[k] = P.issue(f"ds_read_b128 {v(r,4)}, v2 offset:{128*(k[1]+3) + 64*k[2]}")
        else: seq[k] = P.issue(f"ds_read_b128 {v(r,4)}, v3 offset:{128*(31-k[1]) + 64*k[2]}")
    for i, (x, y, acc) in enumerate(mf):
        while nxt < len(order) and free and (order[nxt][1] <= i or (P.n - P.done < 12 and order[nxt][1] <= i + 10)):
            rd(order[nxt][0]); nxt += 1
        P.wait(max(seq[x], seq[y]))
        out.append(f"v_mfma_f32_16x16x32_bf16 {v(acc,4)}, {v(reg[x],4)}, {v(reg[y],4)}, {v(acc,4) if seen[acc] else '0'}")
        seen[acc] = True
        for k in (x, y):
            if last[k] == i: free.append(reg[k])
        want = min(28, (i + 1) * 28 // 64)
        while li < want: out.append(loads[li]); li += 1
        if i == len(mf) - 9:
            for grp, (g, r) in enumerate(((gs, 16), (gb, 20))):
                P.issue(f"ds_read_b64 {v(r,2)}, v4 offset:{512*g}")
                P.issue(f"ds_read_b64 {v(r+2,2)}, v4 offset:{8192 + 512*g}")
    assert li == 28
    out.append(f"s_movk_i32 s38, {4*gs}\ns_movk_i32 s39, {4*gb}")
    return out

def conv(A):
    A(f"s_and_b32 s36, {sW}, 3")
    for g in range(3):
        A(f"s_cmp_eq_u32 s36, {g}\ns_cbranch_scc1 L_cv{g}")
    for g in (3, 2, 1, 0):
        A(f"L_cv{g}:")
        for t in conv_variant(g): A(t)
        if g: A("s_branch L_cvdone")
    A("L_cvdone:\ns_waitcnt lgkmcnt(0)")
    for grp, (acc, r) in enumerate(((8, 16), (12, 20))):
        t = 24 + 16 * grp
        A(f"v_cvt_pk_bf16_f32 v{t}, v{acc}, v{acc+1}\nv_cvt_pk_bf16_f32 v{t+1}, v{acc+2}, v{acc+3}")
        for j in range(2):
            A(f"""v_lshlrev_b32 v{t+2+2*j}, 16, v{t+j}
            v_and_b32 v{t+3+2*j}, 0xffff0000, v{t+j}
            v_lshlrev_b32 v{t+6+2*j}, 16, v{r+2+j}
            v_and_b32 v{t+7+2*j}, 0xffff0000, v{r+2+j}""")
        for j in range(4): A(f"v_add_f32 v{t+2+j}, v{t+2+j}, v{t+6+j}")
        A(f"v_cvt_pk_bf16_f32 v{t}, v{t+2}, v{t+3}\nv_cvt_pk_bf16_f32 v{t+1}, v{t+4}, v{t+5}")
        for j in range(2):
            A(f"""v_lshlrev_b32 v{t+2+2*j}, 16, v{t+j}
            v_and_b32 v{t+3+2*j}, 0xffff0000, v{t+j}
            v_lshlrev_b32 v{t+6+2*j}, 16, v{r+j}
            v_and_b32 v{t+7+2*j}, 0xffff0000, v{r+j}""")
        for j in range(4): A(f"v_add_f32 v{t+2+j}, v{t+2+j}, v{t+6+j}")
        A(f"v_cvt_pk_bf16_f32 v{t}, v{t+2}, v{t+3}\nv_cvt_pk_bf16_f32 v{t+1}, v{t+4}, v{t+5}")
    A(f"""s_mov_b32 s70, 0xaaaaaaaa
    s_mov_b32 s71, 0xaaaaaaaa
    v_mov_b32 v2, s38
    v_mov_b32 v3, s39
    v_cndmask_b32 v56, v40, v24, s[70:71]
    v_cndmask_b32 v57, v41, v25, s[70:71]
    v_cndmask_b32 v2, v2, v3, s[70:71]
    v_lshrrev_b32 v3, 4, {vLane}
    v_add_u32 v2, v2, v3
    v_mov_b32_dpp v58, v56 quad_perm:[1,0,3,2] row_mask:0xf bank_mask:0xf
    v_mov_b32_dpp v59, v57 quad_perm:[1,0,3,2] row_mask:0xf bank_mask:0xf
    v_mul_u32_u24 v2, 57344, v2
    v_bfe_u32 v3, {vLane}, 1, 3
    s_and_b32 s36, {sC}, 1
    s_lshl_b32 s36, s36, 2
    v_xor_b32 v3, s36, v3
    v_lshl_add_u32 v2, v3, 4, v2
    s_lshl_b32 s36, {sC}, 1
    s_add_u32 s36, s36, {sCh}
    s_lshl_b32 s36, s36, 7
    s_add_u32 s36, s36, {WS_HT}
    v_add_u32 v2, s36, v2
    v_cndmask_b32 v60, v24, v58, s[70:71]
    v_cndmask_b32 v61, v25, v59, s[70:71]
    v_cndmask_b32 v62, v58, v40, s[70:71]
    v_cndmask_b32 v63, v59, v41, s[70:71]
    global_store_dwordx4 v2, v[60:63], {pWS} sc1""")

def barrier2(A, epoch_write):
    A(f"""s_lshl_b32 s36, {sC}, 6
    s_add_u32 s36, s36, {WS_FLAG2}
    v_mov_b32 v2, s36
    v_mov_b32 v3, {sTag}
    v_mov_b32 v32, 0x3f803f80
    v_mov_b32 v33, 0x3f803f80
    v_mov_b32 v34, 0x3f803f80
    v_mov_b32 v35, 0x3f803f80
    s_waitcnt vmcnt(0)
    s_barrier
    s_cmp_lg_u32 {sW}, 0
    s_cbranch_scc1 L_b2nf
    s_mov_b64 exec, 1
    global_store_dword v2, v3, {pWS} sc1
    s_mov_b64 exec, -1
    L_b2nf:""")
    stamp(A, 5)
    for s_ in range(28):
        A(f"v_mfma_f32_32x32x16_bf16 v[16:31], {a(4*s_,4)}, v[32:35], {'0' if s_ == 0 else 'v[16:31]'}")
    A(f"""s_mul_i32 s36, {sTB}, 57344
    s_mul_i32 s37, {sW}, 7168
    s_add_u32 s36, s36, s37
    s_add_u32 s36, s36, {WS_HT}
    s_add_u32 s62, s30, s36
    s_addc_u32 s63, s31, 0
    s_add_u32 s64, s62, 4096
    s_addc_u32 s65, s63, 0
    s_mov_b32 m0, s37
    s_cmp_lg_u32 {sW}, 0
    s_cbranch_scc1 L_b2w""")
    for i in range(4):
        A(f"v_add_u32 v{36+i}, {64*i}, {vLane}\nv_min_u32 v{36+i}, 223, v{36+i}\nv_lshlrev_b32 v{36+i}, 6, v{36+i}\nv_add_u32 v{36+i}, {WS_FLAG2}, v{36+i}")
    poll(A, "b2", [f"global_load_dword v{40+i}, v{36+i}, {pWS} sc1" for i in range(4)], [40, 41, 42, 43])
    epoch_write(A)
    A("L_b2w:\ns_barrier")

SPART = 57344
def silu_tile(acc, nm, r, rl, t, vaddr, sbase):
    out = []
    for half in range(2):
        for grp in range(2):
            b = 8 * half + 4 * grp
            L = []
            for i in range(4): L.append(f"v_fma_f32 v{acc+b+i}, v{nm}, v{16+b+i}, v{acc+b+i}")
            for i in range(4): L.append(f"v_mul_f32 v{t+i}, v{rl}, v{acc+b+i}")
            for i in range(4): L.append(f"v_exp_f32 v{t+i}, v{t+i}")
            for i in range(4): L.append(f"v_mul_f32 v{acc+b+i}, v{r}, v{acc+b+i}")
            for i in range(4): L.append(f"v_add_f32 v{t+i}, 1.0, v{t+i}")
            for i in range(4): L.append(f"v_rcp_f32 v{t+i}, v{t+i}")
            for i in range(4): L.append(f"v_mul_f32 v{acc+b+i}, v{acc+b+i}, v{t+i}")
            for i in range(2): L.append(f"v_cvt_pk_bf16_f32 v{t+4+4*half+2*grp+i}, v{acc+b+2*i}, v{acc+b+2*i+1}")
            out += L
        out.append(f"global_store_dwordx4 v{vaddr}, {v(t+4+4*half,4)}, {sbase} offset:{1024*half} sc1")
    return out

def gemm1(A):
    for i in range(7):
        if i == 4: A("s_add_u32 m0, m0, 4096")
        A(f"global_load_lds_dwordx4 v5, s[{62 + 2*(i//4)}:{63 + 2*(i//4)}] offset:{1024*(i%4)} sc1")
    A(f"""v_lshrrev_b32 v2, 5, {vLane}
    v_lshlrev_b32 v2, 10, v2
    v_bfe_u32 v3, {vLane}, 2, 2
    v_lshl_add_u32 v2, v3, 7, v2
    v_bfe_u32 v3, {vLane}, 4, 1
    v_lshl_add_u32 v2, v3, 5, v2
    v_and_b32 v3, 3, {vLane}
    v_lshl_add_u32 v2, v3, 3, v2
    v_bfe_u32 v3, {vLane}, 3, 1
    v_lshlrev_b32 v3, 6, v3
    v_xor_b32 v2, v2, v3
    s_lshl_b32 s36, {sFB}, 13
    s_lshl_b32 s37, {sW}, 11
    s_and_b32 s37, s37, 0x1000
    s_add_u32 s36, s36, s37
    s_lshl_b32 s37, {sW}, 11
    s_and_b32 s37, s37, 0x800
    s_add_u32 s36, s36, s37
    s_lshl_b32 s37, {sW}, 4
    s_and_b32 s37, s37, 64
    v_xor_b32 v15, s37, v2
    v_and_b32 v3, 0xfffffbff, v15
    v_lshrrev_b32 v4, 5, {vLane}
    v_lshl_add_u32 v15, v4, 9, v3
    v_add_u32 v15, s36, v15
    s_and_b32 s40, {sW}, 1
    s_lshl_b32 s37, s40, 6
    v_xor_b32 v2, s37, v2
    s_lshr_b32 s41, {sW}, 1""")
    for j in range(4):
        A(f"s_add_u32 s38, s41, {j}\ns_and_b32 s38, s38, 3\ns_mul_i32 s{44+j}, s38, 14336")
    A(f"""v_and_b32 v3, 31, {vLane}
    v_lshlrev_b32 v3, 3, v3
    s_lshl_b32 s38, s40, 10
    s_add_u32 s38, s38, {SPART}
    v_add_u32 v4, s38, v3
    s_lshl_b32 s39, s41, 8
    v_add_u32 v3, s39, v4
    s_lshl_b32 s36, {sTB}, 1
    s_add_u32 s36, s36, s40
    s_mul_i32 s36, s36, 112
    s_lshl_b32 s37, s61, 1
    s_add_u32 s36, s36, s37
    s_lshl_b32 s36, s36, 10
    s_add_u32 s36, s36, {WS_H1S}
    s_add_u32 s62, s30, s36
    s_addc_u32 s63, s31, 0
    s_mul_i32 s37, s40, {-2*112*1024}
    s_add_u32 s37, s37, {112*1024}
    s_add_u32 s36, s36, s37
    s_add_u32 s64, s30, s36
    s_addc_u32 s65, s31, 0
    v_mov_b32 v8, 0
    v_mov_b32 v9, 0
    v_mov_b32 v10, 0
    v_mov_b32 v11, 0
    s_waitcnt vmcnt(0)
    s_barrier""")
    stamp(A, 7)
    out = []; P = Pipe(out); RING = 7; seq = {}
    def rd(k):
        tt, s_ = divmod(k, 28)
        if s_ % 7 == 0:
            out.append(f"v_add_u32 v{6 + (k // 7) % 2}, s{44 + s_//7}, v2" + (f"\nv_xor_b32 v{6 + (k//7)%2}, 64, v{6 + (k//7)%2}" if tt else ""))
        r = 64 + 4 * (k % RING); ad = 6 + (k // 7) % 2
        P.issue(f"ds_read_b64_tr_b16 {v(r,2)}, v{ad} offset:{2048*(s_%7)}")
        seq[k] = P.issue(f"ds_read_b64_tr_b16 {v(r+2,2)}, v{ad} offset:{2048*(s_%7) + 512}")
    for k in range(RING - 1): rd(k)
    second = []
    for k in range(56):
        tt, s_ = divmod(k, 28)
        if k == 28:
            P.out = out = second
            out.append("s_barrier")
            for t2 in range(2):
                for q in range(4): sq = P.issue(f"ds_read_b64 {v(96 + 8*t2 + 2*q, 2)}, v{4 if t2 == 0 else 5} offset:{256*q}")
            statseq = sq
        if k + RING - 1 < 56: rd(k + RING - 1)
        P.wait(seq[k])
        r = 64 + 4 * (k % RING); acc = 32 + 16 * tt
        out.append(f"v_mfma_f32_32x32x16_bf16 {v(acc,16)}, {a(4*s_,4)}, {v(r,4)}, {v(acc,16) if s_ else '0'}")
        if k < 7:
            for j in range(4):
                out.append(f"v_lshlrev_b32 v12, 16, v{r+j}\nv_and_b32 v13, 0xffff0000, v{r+j}\nv_add_f32 v8, v8, v12\nv_add_f32 v9, v9, v13\nv_fmac_f32 v10, v12, v12\nv_fmac_f32 v11, v13, v13")
        if k == 7:
            out.append("v_add_f32 v8, v8, v9\nv_add_f32 v9, v10, v11\nv_mov_b32 v10, v8\nv_mov_b32 v11, v9\nv_permlane32_swap_b32 v8, v10\nv_permlane32_swap_b32 v9, v11\nv_add_f32 v8, v8, v10\nv_add_f32 v9, v9, v11")
            P.issue("ds_write_b64 v3, v[8:9]")
            out.append("v_xor_b32 v5, 1024, v4")
            P.issue("ds_read_b64_tr_b16 v[112:113], v15")
            P.issue("ds_read_b64_tr_b16 v[114:115], v15 offset:1024")
        if k == 27: first = out
    for t in first: A(t)
    head = second[:9]; rest = second[9:]
    for t in head: A(t)
    E = Asm()
    E(f"s_waitcnt lgkmcnt(0)")
    for t2 in range(2):
        b = 96 + 8 * t2
        E(f"v_add_f32 v{b}, v{b}, v{b+2}\nv_add_f32 v{b+1}, v{b+1}, v{b+3}\nv_add_f32 v{b+4}, v{b+4}, v{b+6}\nv_add_f32 v{b+5}, v{b+5}, v{b+7}\nv_add_f32 v{b}, v{b}, v{b+4}\nv_add_f32 v{b+1}, v{b+1}, v{b+5}")
        ln_finish(E, b, b + 1, b + 2, b + 3)
        E(f"v_rcp_f32 v{b+1}, v{b+3}\nv_mul_f32 v{b}, -1.0, v{b}\nv_mul_f32 v{b+2}, 0xbfb8aa3b, v{b+1}")
    E(f"v_lshlrev_b32 v5, 4, {vLane}")
    for t in E.l: A(t)
    e1 = silu_tile(32, 96, 97, 98, 116, 5, "s[62:63]")
    flat = []
    for t in rest: flat += t.split("\n")
    A.ext(weave(flat, e1))
    stamp(A, 8)
    A.ext(silu_tile(48, 104, 105, 106, 116, 5, "s[64:65]"))

def barrier3(A):
    A(f"""s_mul_i32 s36, {sTB}, 7
    s_add_u32 s37, s36, {sFB}
    s_lshl_b32 s37, s37, 7
    s_add_u32 s37, s37, {WS_FLAG3}
    v_mov_b32 v2, s37
    v_mov_b32 v3, {sTag}
    v_min_u32 v4, 6, {vLane}
    v_add_u32 v4, s36, v4
    v_lshlrev_b32 v4, 7, v4
    v_add_u32 v4, {WS_FLAG3}, v4
    s_lshl_b32 s36, {sFB}, 1
    s_mul_i32 s36, s36, 112
    s_mul_i32 s37, {sW}, 14
    s_add_u32 s36, s36, s37
    s_lshl_b32 s36, s36, 10
    s_add_u32 s36, s36, {WS_W2F + 3072}""")
    for j in range(4):
        A(f"s_add_u32 s38, s36, {(j%2)*7168 + (j//2)*112*1024}\ns_add_u32 s{62+2*j}, s30, s38\ns_addc_u32 s{63+2*j}, s31, 0")
    A(f"""s_lshl_b32 s36, {sTB}, 1
    s_mul_i32 s36, s36, 112
    s_add_u32 s36, s36, s37
    s_lshl_b32 s36, s36, 10
    s_add_u32 s36, s36, {WS_H1S + 3072}""")
    for j in range(4):
        A(f"s_add_u32 s38, s36, {(j%2)*7168 + (j//2)*112*1024}\ns_add_u32 s{40+2*j}, s30, s38\ns_addc_u32 s{41+2*j}, s31, 0")
    A(f"""s_waitcnt vmcnt(0)
    s_barrier
    s_cmp_lg_u32 {sW}, 0
    s_cbranch_scc1 L_b3w
    s_mov_b64 exec, 1
    global_store_dword v2, v3, {pWS} sc1
    s_mov_b64 exec, -1""")
    stamp(A, 9)
    poll(A, "b3", [f"global_load_dword v6, v4, {pWS} sc1"], [6])
    A("L_b3w:")
    for s_ in range(14):
        for dt in range(2):
            j = 2 * dt + s_ // 7
            A(f"global_load_dwordx4 {a(8*s_+4*dt,4)}, v5, s[{62+2*j}:{63+2*j}] offset:{(s_%7-3)*1024} sc1")
    A("s_barrier")

def gemm2(A):
    RING = 16
    A("v_mov_b32 v8, v112\nv_mov_b32 v9, v113\nv_mov_b32 v10, v114\nv_mov_b32 v11, v115")
    out = []
    def ld(k):
        tt, s_ = divmod(k, 14); j = 2 * tt + s_ // 7
        out.append(f"global_load_dwordx4 {v(80 + 4*(k % RING), 4)}, v5, s[{40+2*j}:{41+2*j}] offset:{(s_%7-3)*1024} sc1")
    for k in range(RING): ld(k)
    out.append(f"s_lshl_b32 s36, {sW}, 14\nv_add_u32 v2, s36, v5")
    wr = lambda tt: [f"ds_write_b128 v2, {v(16 + 32*tt + 16*dt + 4*q, 4)} offset:{((tt*2+dt)*4+q)*1024}" for dt in range(2) for q in range(4)]
    w0 = wr(0)
    issued = RING
    for k in range(28):
        tt, s_ = divmod(k, 14)
        out.append(f"s_waitcnt vmcnt({issued - k - 1})")
        for dt in range(2):
            acc = 16 + 32 * tt + 16 * dt
            out.append(f"v_mfma_f32_32x32x16_bf16 {v(acc,16)}, {a(8*s_+4*dt,4)}, {v(80 + 4*(k % RING),4)}, {v(acc,16) if s_ else '0'}")
        if issued < 28: ld(issued); issued += 1
        if k >= 18 and w0: out.append(w0.pop(0))
    for t in out: A(t)
    stamp(A, 10)
    A.ext(wr(1))
    A(f"""s_lshl_b32 s36, {sW}, 11
    v_add_u32 v2, s36, v5
    v_add_u32 v3, 65536, v2
    v_and_b32 v4, 31, {vLane}
    s_lshl_b32 s36, {sTB}, 6
    s_lshl_b32 s37, {sW}, 3
    s_and_b32 s37, s37, 32
    s_add_u32 s36, s36, s37
    v_add_u32 v4, s36, v4
    v_mul_u32_u24 v4, 896, v4
    v_lshrrev_b32 v6, 5, {vLane}
    v_lshl_add_u32 v4, v6, 4, v4
    s_lshl_b32 s36, {sFB}, 7
    s_and_b32 s37, {sW}, 3
    s_lshl_b32 s37, s37, 5
    s_add_u32 s36, s36, s37
    v_add_u32 v4, s36, v4
    s_waitcnt lgkmcnt(0)
    s_barrier""")
    for src in range(8):
        for u in range(2):
            A(f"ds_read_b128 {v(16 + 8*src + 4*u, 4)}, v{2 + src//4} offset:{(src%4)*16384 + u*1024}")
    for src in range(1, 8):
        A(f"s_waitcnt lgkmcnt({2*(7-src)})")
        for j in range(0, 8, 2): A(f"v_pk_add_f32 {v(16+j,2)}, {v(16+j,2)}, {v(16+8*src+j,2)}")
    for j in range(4): A(f"v_cvt_pk_bf16_f32 v{24+j}, v{16+2*j}, v{17+2*j}")
    for j in range(4):
        A(f"""v_lshlrev_b32 v{16+2*j}, 16, v{24+j}
        v_and_b32 v{17+2*j}, 0xffff0000, v{24+j}
        v_lshlrev_b32 v{28+2*j}, 16, v{8+j}
        v_and_b32 v{29+2*j}, 0xffff0000, v{8+j}""")
    for j in range(0, 8, 2): A(f"v_pk_add_f32 {v(16+j,2)}, {v(16+j,2)}, {v(28+j,2)}")
    for j in range(4): A(f"v_cvt_pk_bf16_f32 v{24+j}, v{16+2*j}, v{17+2*j}")
    A(f"""v_permlane32_swap_b32 v24, v26
    v_permlane32_swap_b32 v25, v27
    global_store_dwordx4 v4, v[24:27], {pOUT}""")

def prof_out(A):
    A(f"""s_memtime s[94:95]
    s_waitcnt lgkmcnt(0)
    s_cmp_lg_u32 {sW}, 0
    s_cbranch_scc1 L_end
    s_lshl_b32 s36, s2, 7
    s_add_u32 s36, s36, {WS_DBG}
    v_mov_b32 v2, s36
    s_mov_b64 exec, 1""")
    for i in range(1, 12):
        A(f"s_sub_u32 s36, s{72+2*i}, s72\nv_mov_b32 v3, s36\nglobal_store_dword v2, v3, {pWS} offset:{4*i}")

def part2(A, stage, opts, dump_lds, epoch_write):
    stamp(A, 2)
    w1_setup(A)
    stamp(A, 3)
    conv(A)
    stamp(A, 4)
    barrier2(A, epoch_write)
    stamp(A, 6)
    if stage >= 3: gemm1(A)
    if stage >= 4:
        barrier3(A); gemm2(A)
    if PROF[0]: prof_out(A)
```

```python
import sys
from asmlib import *
import gen1
from gen1 import *
NAME = "sequential_preLN__ssm_conv_s4d__dense_activation_silu__prompt"

def dump_lds(A, nbytes):
    A(f"""s_waitcnt vmcnt(0) lgkmcnt(0)
    s_barrier
    s_mul_i32 s36, s2, {LDS_BYTES}
    s_add_u32 s36, s36, {WS_DBG}
    s_mov_b32 s37, 0
    v_lshlrev_b32 v2, 4, v0
    v_add_u32 v3, s36, v2
    L_dump:
    ds_read_b128 v[4:7], v2
    s_waitcnt lgkmcnt(0)
    global_store_dwordx4 v3, v[4:7], {pWS}
    s_waitcnt vmcnt(0)
    v_add_u32 v2, 8192, v2
    v_add_u32 v3, 8192, v3
    s_add_u32 s37, s37, 8192
    s_cmp_lt_u32 s37, {nbytes}
    s_cbranch_scc1 L_dump""")

def epoch_write(A):
    A(f"""s_cmp_lg_u32 s2, 0
    s_cbranch_scc1 L_noepoch
    v_mov_b32 v2, 0
    v_mov_b32 v3, {sTag}
    s_mov_b64 exec, 1
    global_store_dword v2, v3, {pWS} sc1
    s_mov_b64 exec, -1
    L_noepoch:""")

def build(stage=99, opts=None):
    opts = opts or {}
    A = Asm()
    import gen2
    gen2.PROF[0] = stage >= 9 and stage < 99
    part1(A, gen2.stamp)
    if stage == 1:
        dump_lds(A, 147456)
    else:
        gen2.part2(A, stage, opts, dump_lds, epoch_write)
    A("L_end:\ns_endpgm")
    lines, pads = fix_hazards(A.l)
    head = open("cdna_kernels/" + NAME + ".s.ref").read().split("; Override launch")[0]
    k = NAME + "_kernel"
    txt = head + f"; @launch grid=({NWG},1,1) block=(512,1,1) lds={LDS_BYTES}\n"
    txt += f""".amdgcn_target "amdgcn-amd-amdhsa--gfx950"
.text
.globl {k}
.p2align 8
.type {k},@function
{k}:
""" + "\n".join(lines) + f"""
.section .rodata,"a"
.p2align 6
.amdhsa_kernel {k}
  .amdhsa_next_free_vgpr 256
  .amdhsa_next_free_sgpr 96
  .amdhsa_accum_offset 144
  .amdhsa_group_segment_fixed_size 0
  .amdhsa_kernarg_size 104
  .amdhsa_user_sgpr_count 2
  .amdhsa_user_sgpr_kernarg_segment_ptr 1
  .amdhsa_system_sgpr_workgroup_id_x 1
  .amdhsa_float_denorm_mode_32 3
.end_amdhsa_kernel
"""
    return txt, len(lines), pads

if __name__ == "__main__":
    stage = int(sys.argv[1]) if len(sys.argv) > 1 else 99
    out = sys.argv[2] if len(sys.argv) > 2 else "k.s"
    opts = dict(x.split("=") for x in sys.argv[3:])
    txt, n, pads = build(stage, opts)
    open(out, "w").write(txt)
    print("lines", n, "pad states", pads)
```
